```python
import torch

def _softmax(x, axis=-1):
    return torch.softmax(x, dim=axis)
def _gelu(x):
    return torch.nn.functional.gelu(x, approximate="tanh")
def _silu(x):
    return torch.nn.functional.silu(x)
def _sigmoid(x):
    return torch.sigmoid(x)
def _layernorm(x, axis=-1, eps=1e-5):
    m = x.mean(dim=axis, keepdim=True)
    v = x.var(dim=axis, keepdim=True, unbiased=False)
    return (x - m) / torch.sqrt(v + eps)
def _scatter_add(tgt, idx, src, axis=0):
    return tgt.clone().index_add_(axis, idx, src)
def _segment_sum(src, seg, n):
    out = torch.zeros((n,) + src.shape[1:], dtype=src.dtype)
    return out.index_add_(0, seg, src)
def _pad(x, pw):
    flat = tuple(v for pair in reversed(pw) for v in pair)
    return torch.nn.functional.pad(x, flat)

kernel_name = 'interleave_layers__softmax_full_mha__glu_gated_reglu__prompt'

def setup_inputs():

    _w = (lambda a: (lambda t: t.to(torch.bfloat16) if t.is_floating_point() else t)(torch.as_tensor(a)))
    def _A_setup():
        B, S, D = 1, 2048, 640
        return {
            "x": _w((lambda *s: torch.randn(*s, dtype=torch.bfloat16) * 0.05)(B, S, D)),
            "wqkv": _w((lambda *s: torch.randn(*s, dtype=torch.bfloat16) * 0.05)(D, 3 * D)),
            "wo": _w((lambda *s: torch.randn(*s, dtype=torch.bfloat16) * 0.05)(D, D)),
        }
    _A_in = _A_setup()

    def _B_setup():
        B, S, D, F = 1, 2048, 640, 1536
        return {
            "x": _w((lambda *s: torch.randn(*s, dtype=torch.bfloat16) * 0.05)(B, S, D)),
            "W_gate": _w((lambda *s: torch.randn(*s, dtype=torch.bfloat16) * 0.8)(D, F) * (2.0 / D) ** 0.5),
            "W_up": _w((lambda *s: torch.randn(*s, dtype=torch.bfloat16) * 0.8)(D, F) * (2.0 / D) ** 0.5),
            "W_down": _w((lambda *s: torch.randn(*s, dtype=torch.bfloat16) * 0.8)(F, D) * (1.0 / F) ** 0.5),
        }
    _B_in = _B_setup()

    return {
        "A_x": _A_in["x"],
        "A_wqkv": _A_in["wqkv"],
        "A_wo": _A_in["wo"],
        "B_x": _B_in["x"],
        "B_W_gate": _B_in["W_gate"],
        "B_W_up": _B_in["W_up"],
        "B_W_down": _B_in["W_down"],
    }

def reference(A_x, A_wqkv, A_wo, B_x, B_W_gate, B_W_up, B_W_down):
    def _A_ref(x, wqkv, wo):
        B, S, D = x.shape
        H = 32; Dh = D // H
        qkv = (lambda x, *d: x.permute(*d))((x @ wqkv).reshape(B, S, 3, H, Dh), 2, 0, 3, 1, 4)
        q, k, v = qkv[0], qkv[1], qkv[2]
        scale = Dh ** -0.5
        scores = torch.einsum("bhqd,bhkd->bhqk", q, k) * scale
        p = _softmax(scores, axis=-1)
        o = torch.einsum("bhqk,bhkd->bhqd", p, v)
        return (lambda x, *d: x.permute(*d))(o, 0, 2, 1, 3).reshape(B, S, D) @ wo

    def _B_ref(x, W_gate, W_up, W_down):
        gate = torch.einsum("bsd,df->bsf", x, W_gate)
        up = torch.einsum("bsd,df->bsf", x, W_up)
        gate = gate * (lambda x, dt: x.to(dt))(gate > 0, gate.dtype)
        h = gate * up
        return torch.einsum("bsf,fd->bsd", h, W_down)

    x = A_x
    x = x + _A_ref(_layernorm(x, axis=-1), A_wqkv, A_wo)
    x = x + _B_ref(_layernorm(x, axis=-1), B_W_gate, B_W_up, B_W_down)
    x = x + _A_ref(_layernorm(x, axis=-1), A_wqkv, A_wo)
    x = x + _B_ref(_layernorm(x, axis=-1), B_W_gate, B_W_up, B_W_down)
    return x
```

```python
import sys, os, subprocess, struct, time
sys.path.insert(0, "cdna_kernels")
import numpy as np
from cdna_launch import AsmKernel, DeviceBuffer, with_harness_metadata, pack_ptr_kernargs, _hip, _check

TEMPLATE = """; @launch grid=({grid},1,1) block=({block},1,1) lds={lds}
.amdgcn_target "amdgcn-amd-amdhsa--gfx950"
.text
.globl mb_kernel
.p2align 8
.type mb_kernel,@function
mb_kernel:
    s_load_dwordx2 s[4:5], s[0:1], 0
    s_load_dwordx2 s[6:7], s[0:1], 8
    s_waitcnt lgkmcnt(0)
    s_mov_b32 s12, s4
    s_mov_b32 s13, s5
    s_mov_b32 s14, 0x100000
    s_mov_b32 s15, 0x00020000
    s_mov_b32 s16, s6
    s_mov_b32 s17, s7
    s_mov_b32 s18, {inbytes}
    s_mov_b32 s19, 0x00020000
{init}
    s_mov_b32 s20, {iters}
    s_waitcnt vmcnt(0) lgkmcnt(0)
    s_barrier
    s_memtime s[8:9]
    s_memrealtime s[70:71]
    s_waitcnt lgkmcnt(0)
.p2align 6
L_loop:
{body}
    s_sub_u32 s20, s20, 1
    s_cmp_lg_u32 s20, 0
    s_cbranch_scc1 L_loop
    s_waitcnt vmcnt(0) lgkmcnt(0)
    s_nop 15
    s_nop 15
    s_memtime s[10:11]
    s_memrealtime s[72:73]
    s_waitcnt lgkmcnt(0)
    s_sub_u32 s21, s10, s8
    s_sub_u32 s72, s72, s70
    v_lshrrev_b32 v1, 6, v0
    s_mul_i32 s22, s2, {nwaves}
    v_add_u32 v1, s22, v1
    v_lshlrev_b32 v1, 2, v1
    v_mov_b32 v2, s21
    buffer_store_dword v2, v1, s[12:15], 0 offen
    v_mov_b32 v3, s72
    s_mov_b32 s73, 0x80000
    buffer_store_dword v3, v1, s[12:15], s73 offen
    s_waitcnt vmcnt(0)
    s_endpgm
.section .rodata,"a"
.p2align 6
.amdhsa_kernel mb_kernel
  .amdhsa_next_free_vgpr {vgpr}
  .amdhsa_next_free_sgpr 102
  .amdhsa_accum_offset {accum}
  .amdhsa_group_segment_fixed_size 0
  .amdhsa_kernarg_size 16
  .amdhsa_user_sgpr_count 2
  .amdhsa_user_sgpr_kernarg_segment_ptr 1
  .amdhsa_system_sgpr_workgroup_id_x 1
.end_amdhsa_kernel
"""

_cnt = [0]
LAST_RT=np.ones(1); LAST_CYC=np.ones(1)
def clk():
    i=np.argmax(LAST_CYC); return LAST_CYC[i]/LAST_RT[i]/10, LAST_RT[i]/100
def build(body, init="", iters=1000, grid=1, block=256, lds=0, vgpr=128, inbytes=1<<20):
    nw = block//64
    asm = TEMPLATE.format(body=body, init=init, iters=iters, grid=grid, block=block, lds=lds,
                          vgpr=vgpr, accum=min(256,(vgpr+3)//4*4), nwaves=nw, inbytes=inbytes)
    asm = with_harness_metadata(asm, "mb_kernel", 2)
    _cnt[0] += 1
    base = f"mb_{os.getpid()}_{_cnt[0]}"
    open(base+".s","w").write(asm)
    r = subprocess.run(["clang","-x","assembler","-target","amdgcn-amd-amdhsa","-mcpu=gfx950",base+".s","-o",base+".co"],capture_output=True,text=True)
    if r.returncode:
        print(r.stderr); raise SystemExit(1)
    return base+".co"

def run(body, init="", iters=1000, grid=1, block=256, lds=0, vgpr=128, inbytes=1<<20, inbuf=None, reps=3):
    co = build(body, init, iters, grid, block, lds, vgpr, inbytes)
    k = AsmKernel(co, "mb_kernel")
    out = DeviceBuffer(1<<20)
    if inbuf is None:
        inbuf = DeviceBuffer.from_numpy(np.random.randint(0, 2**14, size=inbytes//2).astype(np.uint16))
    ka = pack_ptr_kernargs([out.ptr, inbuf.ptr])
    nw = block//64
    res = None
    for _ in range(reps):
        k.launch((grid,1,1),(block,1,1),ka,lds)
        _check(_hip.hipDeviceSynchronize())
        full = out.to_numpy(np.uint32,(1<<18,)).astype(np.float64)
        res = full[:grid*nw]/iters
        global LAST_RT, LAST_CYC
        LAST_RT = full[1<<17:(1<<17)+grid*nw]; LAST_CYC = full[:grid*nw]
    k.unload()
    return res

if not os.path.exists('/dev/kfd'):
    def run(body, init="", iters=1000, grid=1, block=256, lds=0, vgpr=128, inbytes=1<<20, inbuf=None, reps=3):
        build(body, init, iters, grid, block, lds, vgpr, inbytes)
        return np.zeros(grid*block//64)
```

```python
from mb import *
import mb
def test(region, shared, nx, depth=16, block=256):
    step=block*16; n=region//step
    init=f"""    v_lshlrev_b32 v1, 4, v0
    s_lshr_b32 s24, s2, {3 if shared else 0}
    s_mul_i32 s24, s24, {region}
    v_add_u32 v1, s24, v1
    v_lshrrev_b32 v2, 6, v0
    s_nop 0
    v_readfirstlane_b32 s25, v2
    s_lshl_b32 s25, s25, 10
    s_and_b32 s27, s2, 7
"""
    L=[f"    s_cmp_ge_u32 s27, {nx}\n    s_cbranch_scc1 Lskip","    s_mov_b32 s26, 0"]
    for i in range(n):
        L.append(f"    s_add_u32 m0, s25, {(i%depth)*step}\n    s_nop 0\n    buffer_load_dwordx4 v1, s[16:19], s26 offen lds\n    s_add_u32 s26, s26, {step}\n    s_waitcnt vmcnt({depth-1})")
    L.append("Lskip:")
    r=run("\n".join(L),init,iters=10,grid=256,block=block,lds=depth*step,vgpr=128,inbytes=region*(32 if shared else 256))
    t=mb.LAST_RT.max()/100/10
    print(f"region={region>>10}KB/WG shared={shared} activeXCD={nx} depth={depth}: {region/max(r.max(),1):6.1f} B/clk/CU  {region*32/max(t,1e-9)/1e6:5.2f} TB/s per XCD",flush=True)
for shared in (1,0):
    for nx in (8,4,1):
        test(262144,shared,nx)
test(262144,1,8,32)
test(262144,1,8,6)
```
